```python
import torch

def _softmax(x, axis=-1):
    return torch.softmax(x, dim=axis)

def _gelu(x):
    return torch.nn.functional.gelu(x, approximate='tanh')

def _silu(x):
    return torch.nn.functional.silu(x)

def _sigmoid(x):
    return torch.sigmoid(x)

def _layernorm(x, axis=-1, eps=1e-05):
    m = x.mean(dim=axis, keepdim=True)
    v = x.var(dim=axis, keepdim=True, unbiased=False)
    return (x - m) / torch.sqrt(v + eps)

def _scatter_add(tgt, idx, src, axis=0):
    return tgt.clone().index_add_(axis, idx, src)

def _segment_sum(src, seg, n):
    out = torch.zeros((n,) + src.shape[1:], dtype=src.dtype)
    return out.index_add_(0, seg, src)

def _pad(x, pw):
    flat = tuple((v for pair in reversed(pw) for v in pair))
    return torch.nn.functional.pad(x, flat)
kernel_name = 'standalone__memory_aug_recurrent_mem_tr__prompt'

def setup_inputs():

    _w = lambda a: (lambda t: t.to(torch.bfloat16) if t.is_floating_point() else t)(torch.as_tensor(a))
    B, S, Dm = (1, 2048, 640)
    H, Dh = (32, 128)
    M, seg = (8, 32)
    seg = min(seg, S)
    S = S // seg * seg
    return {'x': _w((lambda *s: torch.randn(*s, dtype=torch.bfloat16) * 0.05)(B, S, Dm)), 'mem0': _w((lambda *s: torch.randn(*s, dtype=torch.bfloat16) * 0.4)(B, M, Dm)), 'Wq': _w((lambda *s: torch.randn(*s, dtype=torch.bfloat16) * 6.4)(Dm, H, Dh) * Dm ** (-0.5)), 'Wk': _w((lambda *s: torch.randn(*s, dtype=torch.bfloat16) * 6.4)(Dm, H, Dh) * Dm ** (-0.5)), 'Wv': _w((lambda *s: torch.randn(*s, dtype=torch.bfloat16) * 0.4)(Dm, H, Dh) * Dm ** (-0.5)), 'Wo': _w((lambda *s: torch.randn(*s, dtype=torch.bfloat16) * 0.4)(H, Dh, Dm) * (H * Dh) ** (-0.5)), 'seg_len': seg}

def reference(x, mem0, Wq, Wk, Wv, Wo, seg_len):
    B, S, Dm = x.shape
    H, Dh = (Wq.shape[1], Wq.shape[2])
    M = mem0.shape[1]
    scale = Dh ** (-0.5)
    n_seg = S // seg_len
    L = M + seg_len
    idx = torch.arange(L)
    mask = (idx[:, None] < M) | (idx[:, None] >= idx[None, :])
    mem = mem0
    outs = []
    for s in range(n_seg):
        xs = x[:, s * seg_len:(s + 1) * seg_len, :].clone()
        h = torch.concatenate([mem, xs], axis=1)
        q = torch.einsum('btd,dhe->bhte', h, Wq)
        k = torch.einsum('btd,dhe->bhte', h, Wk)
        v = torch.einsum('btd,dhe->bhte', h, Wv)
        scores = torch.einsum('bhqe,bhke->bhqk', q, k) * scale
        scores = torch.where(mask[None, None], scores, -1000000000.0)
        p = _softmax(scores, axis=-1)
        o = torch.einsum('bhqk,bhke->bhqe', p, v)
        o = torch.einsum('bhte,hed->btd', o, Wo)
        mem = o[:, :M, :].clone()
        outs.append(o[:, M:, :])
    return torch.concatenate(outs, axis=1)
```

```python
import re

_REG = re.compile(r"\b([vas])\[(\d+):(\d+)\]|\b([vas])(\d+)\b|\b(vcc|exec|m0|scc)\b")


def regs_of(tok):
    out = set()
    for m in _REG.finditer(tok):
        if m.group(1):
            for i in range(int(m.group(2)), int(m.group(3)) + 1):
                out.add((m.group(1), i))
        elif m.group(4):
            out.add((m.group(4), int(m.group(5))))
        else:
            out.add((m.group(6), 0))
    return out


def split_ops(s):
    ops, depth, cur = [], 0, ""
    for ch in s:
        if ch in "[(":
            depth += 1
        if ch in "])":
            depth -= 1
        if ch == "," and depth == 0:
            ops.append(cur.strip())
            cur = ""
        else:
            cur += ch
    if cur.strip():
        ops.append(cur.strip())
    return ops


TRANS = ("v_exp_f32", "v_log_f32", "v_rcp_f32", "v_rsq_f32", "v_sqrt_f32", "v_sin_f32", "v_cos_f32")


class Ins:
    __slots__ = ("text", "mn", "ops", "kind", "defs", "uses", "srcc", "passes", "dpp", "stdata", "isnop")

    def __init__(self, text):
        self.text = text
        t = text.split(";")[0].strip()
        parts = t.split(None, 1)
        self.mn = parts[0]
        rest = parts[1] if len(parts) > 1 else ""
        self.ops = split_ops(rest)
        self.defs, self.uses, self.srcc = set(), set(), set()
        self.passes = 0
        self.dpp = "_dpp" in self.mn or "row_" in rest or "quad_perm" in rest
        self.stdata = set()
        self.isnop = 0
        mn, ops = self.mn, self.ops
        first_tok = [o.split()[0] if o else o for o in ops]
        if mn == "s_nop":
            self.kind = "salu"
            self.isnop = int(ops[0], 0) + 1
        elif mn.startswith("v_mfma") or mn.startswith("v_smfmac"):
            self.kind = "mfma"
            self.passes = 8 if "32x32" in mn else 4
            self.defs = regs_of(first_tok[0])
            self.uses = regs_of(first_tok[1]) | regs_of(first_tok[2])
            if mn.startswith("v_smfmac"):
                self.uses |= regs_of(first_tok[3])
                self.srcc = regs_of(first_tok[0])
            else:
                self.srcc = regs_of(first_tok[3])
        elif mn.startswith("v_"):
            self.kind = "valu"
            if mn.startswith("v_cmp"):
                self.defs = regs_of(first_tok[0])
                for o in first_tok[1:]:
                    self.uses |= regs_of(o)
            elif mn.startswith("v_permlane") and "swap" in mn:
                self.defs = regs_of(first_tok[0]) | regs_of(first_tok[1])
                self.uses = set(self.defs)
            elif mn.startswith(("v_add_co", "v_sub_co", "v_addc_co", "v_subb_co")):
                self.defs = regs_of(first_tok[0]) | regs_of(first_tok[1])
                for o in first_tok[2:]:
                    self.uses |= regs_of(o)
            else:
                self.defs = regs_of(first_tok[0])
                for o in first_tok[1:]:
                    self.uses |= regs_of(o)
                if mn.startswith(("v_fmac", "v_pk_fmac")) or self.dpp or mn.startswith("v_writelane"):
                    self.uses |= self.defs
        elif mn.startswith(("buffer_", "global_")):
            self.kind = "vmem"
            allr = set()
            for o in first_tok:
                allr |= regs_of(o)
            if " lds" in (" " + rest):
                self.uses = allr | {("m0", 0)}
            elif "load" in mn:
                self.defs = regs_of(first_tok[0])
                for o in first_tok[1:]:
                    self.uses |= regs_of(o)
            elif "atomic" in mn:
                self.uses = allr
                if "sc0" in rest:
                    self.defs = regs_of(first_tok[0])
            else:
                self.uses = allr
                if mn.endswith(("x3", "x4")):
                    self.stdata = regs_of(first_tok[0] if mn.startswith("buffer_") else first_tok[1])
        elif mn.startswith("ds_"):
            self.kind = "ds"
            if "read" in mn or "bpermute" in mn or "permute" in mn or "swizzle" in mn:
                self.defs = regs_of(first_tok[0])
                for o in first_tok[1:]:
                    self.uses |= regs_of(o)
            else:
                for o in first_tok:
                    self.uses |= regs_of(o)
        elif mn.startswith("s_"):
            self.kind = "salu"
            nodef = ("s_cmp", "s_cbranch", "s_branch", "s_waitcnt", "s_barrier", "s_endpgm", "s_sleep", "s_setprio",
                     "s_bitcmp", "s_nop")
            if mn.startswith(nodef):
                for o in first_tok:
                    self.uses |= regs_of(o)
            else:
                if first_tok:
                    self.defs = regs_of(first_tok[0])
                for o in first_tok[1:]:
                    self.uses |= regs_of(o)
        else:
            raise ValueError("unknown instruction: " + text)


def need_states(p, c):
    n = 0
    vregs = lambda s: {r for r in s if r[0] in "va"}
    sregs = lambda s: {r for r in s if r[0] in ("s", "vcc")}
    if p.kind == "valu":
        pd = vregs(p.defs)
        if c.kind == "mfma" and pd & (c.uses | c.srcc):
            n = max(n, 2)
        if c.kind == "valu":
            if (c.mn.startswith("v_permlane") or c.dpp) and pd & c.uses:
                n = max(n, 2)
            if c.mn.startswith(("v_readfirstlane", "v_readlane")) and pd & c.uses:
                n = max(n, 1)
            if p.mn.startswith(TRANS) and not c.mn.startswith(TRANS) and pd & c.uses:
                n = max(n, 1)
            if sregs(p.defs) & c.uses:
                n = max(n, 4 if c.mn.startswith(("v_readlane", "v_writelane")) else 2)
        if p.mn.startswith(TRANS) and c.kind in ("vmem", "ds") and pd & c.uses:
            n = max(n, 1)
        if c.kind == "vmem" and sregs(p.defs) & c.uses:
            n = max(n, 5)
        if c.kind == "salu" and sregs(p.defs) & c.uses and not c.mn.startswith("s_cbranch"):
            n = max(n, 1)
    if p.kind == "mfma":
        big = {4: 8, 8: 12}[p.passes]
        ovl = {4: 6, 8: 10}[p.passes]
        war = {4: 3, 8: 7}[p.passes]
        if c.kind == "mfma":
            if p.defs & c.uses:
                n = max(n, big)
            if p.defs & c.srcc:
                if not (p.defs == c.srcc and p.mn == c.mn):
                    n = max(n, ovl)
            elif p.defs & c.defs:
                n = max(n, big)
        elif c.kind in ("valu", "vmem", "ds"):
            if p.defs & (c.uses | c.defs):
                n = max(n, big)
            if c.kind == "valu" and p.srcc & c.defs:
                n = max(n, war)
    if p.kind == "vmem" and p.stdata:
        if c.kind in ("valu",) and p.stdata & c.defs:
            n = max(n, 2)
        elif p.stdata & c.defs:
            n = max(n, 1)
    if p.kind == "salu" and ("m0", 0) in p.defs and c.kind == "vmem" and ("m0", 0) in c.uses:
        n = max(n, 1)
    return n


class Asm:
    def __init__(self):
        self.lines = []
        self.uid = 0

    def __call__(self, text):
        for ln in text.split("\n"):
            s = ln.strip()
            if not s:
                continue
            if s.startswith(";") or s.startswith("."):
                self.lines.append(("r", s))
            elif s.endswith(":"):
                self.lines.append(("l", s))
            else:
                m = re.search(r"offset:(\d+)", s)
                if m:
                    lim = 65535 if s.startswith("ds_") else 4095
                    assert int(m.group(1)) <= lim, "offset too large: " + s
                m = re.search(r"vmcnt\((\d+)\)", s)
                if m:
                    assert int(m.group(1)) <= 63, s
                m = re.search(r"lgkmcnt\((\d+)\)", s)
                if m:
                    assert int(m.group(1)) <= 15, s
                self.lines.append(("i", s))

    def label(self, p="L"):
        self.uid += 1
        return f"{p}_{self.uid}"

    def finish(self):
        out = []
        win = []
        nnop = 0
        for kind, text in self.lines:
            if kind != "i":
                out.append(text if kind == "l" else text)
                continue
            ins = Ins(text)
            need = 0
            for p, dist in win:
                r = need_states(p, ins) - dist
                need = max(need, r)
            if need > 0:
                k = need
                while k > 0:
                    c = min(k, 16)
                    out.append(f"  s_nop {c - 1}")
                    k -= c
                nnop += 1
                win = [(p, d + need) for p, d in win]
            out.append("  " + text)
            step = ins.isnop if ins.isnop else 1
            win = [(p, d + step) for p, d in win if d + step < 20]
            win.append((ins, 0))
        self.nnop = nnop
        return "\n".join(out) + "\n"
```

```python
C1 = 0x3E0293EE
NEG_C1 = 0xBE0293EE
NEGBIG = 0xFE000000


def emit(G):
    globals().update({k: v for k, v in G.items() if not k.startswith("__")})
    phaseB()
    chain_role()
    helper_role()


def vr(b, n=4):
    return f"v[{b}:{b + n - 1}]"


def wreg(i, n):
    if i < 256:
        assert i + n <= 256
        return f"a[{i}:{i + n - 1}]"
    return f"v[{i - 128}:{i - 128 + n - 1}]"


vL16, vIdx, vExW, vExR, vKV, vWoL, vPSt, vSpec, vFlag, vBias = [f"v{i}" for i in range(8, 18)]
M0, ACC, KX = 32, 72, 88
sH = "s48"
sS = "s49"
sMa, sMb, sMc = "s50", "s51", "s52"
sT0, sT1, sT2 = "s53", "s54", "s55"
sCnt = "s47"
sC1, sNC1 = "s56", "s57"
sPh = "s58"
sTile = "s59"
sLB = "s60"
sMask = "s61"


def lane_decomp():
    a(f"""
v_and_b32 v4, 15, v1
v_lshrrev_b32 v5, 4, v1
v_lshrrev_b32 v6, 2, v4
v_and_b32 v7, 3, v1
v_lshlrev_b32 {vL16}, 4, v1
v_mov_b32 {vIdx}, 0x4444
v_mov_b32 v18, 0xeeee
v_cmp_lt_u32 vcc, 7, v4
v_cndmask_b32 {vIdx}, {vIdx}, v18, vcc
""")


def load_weights(units):
    vSrcP, vSrcO, vTrP, vTrO = "v20", "v21", "v22", "v23"
    a(f"""
s_lshl_b32 {sLB}, {sWAVE}, 15
s_lshl_b32 s46, {sWAVE}, 6
v_lshrrev_b32 v18, 2, v1
v_lshlrev_b32 {vSrcP}, 13, v18
v_lshl_add_u32 {vSrcP}, v7, 4, {vSrcP}
v_add_u32 {vSrcP}, s46, {vSrcP}
v_mul_u32_u24 {vSrcO}, 1280, v18
v_lshl_add_u32 {vSrcO}, v7, 4, {vSrcO}
v_add_u32 {vSrcO}, s46, {vSrcO}
v_lshrrev_b32 v18, 1, v5
v_and_b32 v19, 1, v5
v_lshrrev_b32 v24, 1, v6
v_and_b32 v25, 1, v6
v_lshlrev_b32 {vTrP}, 4, v18
v_lshl_add_u32 {vTrP}, v19, 2, {vTrP}
v_lshl_add_u32 {vTrP}, v24, 3, {vTrP}
v_add_u32 {vTrP}, {vTrP}, v25
v_lshlrev_b32 {vTrP}, 6, {vTrP}
v_lshl_add_u32 {vTrP}, v7, 3, {vTrP}
v_add_u32 {vTrP}, {sLB}, {vTrP}
v_lshlrev_b32 {vTrO}, 4, v19
v_lshl_add_u32 {vTrO}, v18, 2, {vTrO}
v_add_u32 {vTrO}, {vTrO}, v25
v_lshlrev_b32 {vTrO}, 6, {vTrO}
v_lshl_add_u32 {vTrO}, v24, 5, {vTrO}
v_lshl_add_u32 {vTrO}, v7, 3, {vTrO}
v_add_u32 {vTrO}, {sLB}, {vTrO}
s_lshl_b32 {sT1}, {sH}, 8
s_mul_i32 {sT2}, {sH}, 163840
""")

    def issue(k):
        srd, kind, const, _ = units[k]
        for q in range(4):
            a(f"s_add_u32 m0, {sLB}, {(k % 8) * 4096 + q * 1024}")
            if kind == "P":
                a(f"s_add_u32 {sT0}, {sT1}, {const + 16 * q * 8192}")
                a(f"buffer_load_dwordx4 {vSrcP}, {srd}, {sT0} offen lds")
            else:
                a(f"s_add_u32 {sT0}, {sT2}, {const + 16 * q * 1280}")
                a(f"buffer_load_dwordx4 {vSrcO}, {srd}, {sT0} offen lds")

    n = len(units)
    for k in range(min(8, n)):
        issue(k)
    for k in range(n):
        left = min(n, k + 8) - (k + 1)
        a(f"s_waitcnt vmcnt({4 * left})")
        srd, kind, const, dests = units[k]
        for d, off in dests:
            a(f"ds_read_b64_tr_b16 {d}, {vTrP if kind == 'P' else vTrO} offset:{(k % 8) * 4096 + off}")
        if k + 8 < n:
            a("s_waitcnt lgkmcnt(0)")
            issue(k + 8)
    a("s_waitcnt lgkmcnt(0)")


def proj_unit(srd, c, regs_of_tile):
    dests = []
    for j in range(2):
        for i in range(4):
            dests.append((regs_of_tile(j, i), j * 32 + (2 * (i & 1) + 32 * (i >> 1)) * 64))
    return (srd, "P", 64 * c * 8192, dests)


def wo_unit(i5, q2, regs_of):
    dests = []
    for ul in range(2):
        for i in range(4):
            dests.append((regs_of(2 * q2 + ul, i), (32 * ul + 8 * (i >> 1) + 2 * (i & 1)) * 64))
    return (SWO, "O", 64 * q2 * 1280 + i5 * 256, dests)


def signal_init():
    a(f"""
s_waitcnt vmcnt(0)
s_barrier
s_cmp_lg_u32 {sWAVE}, 0
s_cbranch_scc1 {{skip}}
s_mov_b64 exec, 1
v_mov_b32 v18, 1
buffer_atomic_add v18, v3, {SDBG}, 0 offen offset:40
s_mov_b64 exec, -1
{{skip}}:
""".replace("{skip}", a.label("L_si")))


def mem_phase(base, ntile, wbase, tag, fills=None):
    lp = a.label("L_mp")
    a(f"""
s_add_u32 {sT0}, {sMa}, {base}
s_add_u32 {sT1}, {sMa}, {base + 4096}
s_add_u32 {sT2}, {sMa}, {base + 8192}
s_mov_b32 {sCnt}, {SPIN}
""")

    def ld(c):
        return f"buffer_load_dwordx4 {vr(M0 + 4 * c)}, {vL16}, {SWS}, {[sT0, sT1, sT2][c >> 2]} offen offset:{(c & 3) * 1024} sc1"

    def chk(c):
        m = M0 + 4 * c
        return [f"v_max3_u32 v18, v{m}, v{m + 1}, v{m + 2}", f"v_max_u32 v18, v18, v{m + 3}", "v_cmp_eq_u32 vcc, -1, v18"]

    a(f"{lp}:")
    for c in range(4):
        a(ld(c))
    spin_check(sCnt)
    a("s_waitcnt vmcnt(3)")
    for i in chk(0):
        a(i)
    a(f"s_cbranch_vccnz {lp}")
    for c in range(4, 10):
        a(ld(c))
    retry = []
    for c in range(10):
        mf = [f"v_smfmac_f32_16x16x64_bf16 {vr(ACC + 4 * t)}, {vr(M0 + 4 * c)}, {wreg(wbase(c, t), 8)}, {vIdx}" for t in range(ntile)]
        nxt = []
        if c + 1 < 10:
            lr, lo = a.label("L_mr"), a.label("L_mo")
            nxt = [f"s_waitcnt vmcnt({9 - (c + 1)})"] + chk(c + 1)
            retry.append((c + 1, lr, lo))
        a(mf[0])
        for i in nxt:
            a(i)
        for m in mf[1:]:
            a(m)
        if fills and fills.get(c):
            for f in fills[c]:
                a(f)
        if c + 1 < 10:
            a(f"s_cbranch_vccnz {lr}")
            a(f"{lo}:")
    def emit_retry():
        for c, lr, lo in retry:
            a(f"{lr}:")
            a(ld(c))
            spin_check(sCnt)
            a("s_waitcnt vmcnt(0)")
            for i in chk(c):
                a(i)
            a(f"s_cbranch_vccnz {lr}")
            a(f"s_branch {lo}")
    return emit_retry


def phase_check(regs, dst, fail):
    l1, l2 = a.label("L_ph1"), a.label("L_phd")
    for ph, op in ((0, 0xFE), (1, 0x80)):
        if ph == 0:
            a(f"s_cmp_lg_u32 {sPh}, 0")
            a(f"s_cbranch_scc1 {l1}")
        else:
            a(f"{l1}:")
        rs = list(regs)
        a(f"v_bitop3_b32 {dst}, v{rs[0]}, v{rs[1]}, v{rs[2]} bitop3:{op}")
        rs = rs[3:]
        while rs:
            x = rs[:2]
            rs = rs[2:]
            if len(x) == 1:
                x = [x[0], x[0]]
            a(f"v_bitop3_b32 {dst}, {dst}, v{x[0]}, v{x[1]} bitop3:{op}")
        if ph == 0:
            a(f"s_branch {l2}")
    a(f"{l2}:")
    a(f"v_and_b32 {dst}, 1, {dst}")
    a(f"v_cmp_ne_u32 vcc, {sPh}, {dst}")
    a(f"s_cbranch_vccnz {fail}")


def wo_phase(oA, bsrc, wacc, scale, region, st, pre=None):
    def post(i):
        w = wacc[i & 1]
        o = []
        if scale is not None:
            o += [f"v_mul_f32 v{w + r}, v{w + r}, v{scale + r}" for r in range(4)]
        o += [f"v_cvt_pk_bf16_f32 v18, v{w}, v{w + 1}", f"v_cvt_pk_bf16_f32 v19, v{w + 2}, v{w + 3}",
              f"v_and_or_b32 v18, v18, {sMask}, v16", f"v_and_or_b32 v19, v19, {sMask}, v16",
              f"s_mov_b32 {sT0}, {region + i * 65536}",
              f"buffer_store_dwordx2 v[18:19], {vPSt}, {SWS}, {sT0} offen {st}"]
        return o
    for i in range(5):
        w = wacc[i & 1]
        if pre and pre.get(i):
            for f in pre[i]:
                a(f)
        for u in range(4):
            a(f"v_smfmac_f32_16x16x64_bf16 {vr(w)}, {vr(oA + 4 * u)}, {bsrc(i, u)}, {vIdx}")
            if u == 2 and i > 0:
                for f in post(i - 1):
                    a(f)
                if i + 1 < 5:
                    wn = wacc[(i + 1) & 1]
                    for r in range(4):
                        a(f"v_mov_b32 v{wn + r}, 0")
    for f in post(4):
        a(f)


LDS_WOL, LDS_KV, LDS_EX = 0, 98304, 131072


def chain_role():
    a(f"""
L_chain:
s_mov_b32 {sH}, {sROLE}
""")
    lane_decomp()
    stamp(0)
    a(f"""
v_mov_b32 v20, -1
v_mov_b32 v21, -1
v_mov_b32 v22, -1
v_mov_b32 v23, -1
v_lshlrev_b32 v18, 4, v0
s_mul_i32 s46, {sH}, 12288
""")
    for reg in (WS_PART, WS_Y):
        for i in range(3):
            a(f"s_add_u32 {sT0}, s46, {reg + i * 4096}")
            a(f"buffer_store_dwordx4 v[20:23], v18, {SWS}, {sT0} offen sc1")
    a(f"s_lshl_b32 s46, {sH}, 13")
    for i in range(2):
        a(f"s_add_u32 {sT0}, s46, {WS_PMM + i * 4096}")
        a(f"buffer_store_dwordx4 v[20:23], v18, {SWS}, {sT0} offen sc1")
    signal_init()
    if "C" not in ROLES:
        a("s_branch L_end")
    units = []
    for c in range(10):
        for m, srd in enumerate((SWQ, SWK)):
            units.append(proj_unit(srd, c, lambda j, i, c=c, m=m: wreg((c * 4 + m * 2 + j) * 8 + 2 * i, 2)))
    for i5 in range(2):
        for q2 in range(2):
            units.append(wo_unit(i5, q2, lambda u, i, i5=i5: wreg(320 + (i5 * 4 + u) * 8 + 2 * i, 2)))
    for i5 in range(2, 5):
        for q2 in range(2):
            units.append(wo_unit(i5, q2, lambda u, i, i5=i5: vr(32 + ((i5 - 2) * 4 + u) * 8 + 2 * i, 2)))
    load_weights(units)
    a(f"""
s_barrier
s_mul_i32 s46, {sWAVE}, 24576
v_add_u32 {vWoL}, s46, {vL16}
""")
    for k in range(24):
        a(f"ds_write_b128 {vWoL}, {vr(32 + 4 * k)} offset:{LDS_WOL + k * 1024}")
    stamp(1)
    a(f"""
s_lshl_b32 s46, {sWAVE}, 10
v_lshlrev_b32 {vExW}, 5, v4
v_lshl_add_u32 {vExW}, v5, 3, {vExW}
v_add_u32 {vExW}, s46, {vExW}
v_add_u32 {vExW}, {LDS_EX}, {vExW}
v_lshl_add_u32 {vExR}, v5, 2, v6
v_lshlrev_b32 {vExR}, 5, {vExR}
v_lshl_add_u32 {vExR}, v7, 3, {vExR}
v_add_u32 {vExR}, {LDS_EX}, {vExR}
v_add_u32 {vKV}, {LDS_KV}, {vL16}
v_lshrrev_b32 v18, 1, v5
v_and_b32 v19, 1, v5
s_lshl_b32 s46, {sWAVE}, 14
s_lshl_b32 {sT0}, {sH}, 8
s_add_u32 s46, s46, {sT0}
v_lshlrev_b32 {vPSt}, 13, v18
v_lshl_add_u32 {vPSt}, v4, 4, {vPSt}
v_lshl_add_u32 {vPSt}, v19, 3, {vPSt}
v_add_u32 {vPSt}, s46, {vPSt}
v_mov_b32 {vBias}, 0
v_mov_b32 v20, {NEGBIG}
v_cmp_gt_u32 vcc, 2, v5
v_cndmask_b32 {vBias}, {vBias}, v20, vcc
v_mov_b32 v24, 0x3f803f80
v_mov_b32 v25, 0x3f803f80
v_mov_b32 v26, 0x3f803f80
v_mov_b32 v27, 0x3f803f80
s_mov_b32 {sC1}, {C1}
s_mov_b32 {sNC1}, {NEG_C1}
s_mov_b32 {sMask}, 0xfffffffe
v_and_b32 v20, 7, v4
""")
    for d in range(4):
        a(f"""
v_mov_b32 v{28 + d}, 0
v_mov_b32 v21, 0x3f80
v_cmp_eq_u32 vcc, {2 * d}, v4
v_cndmask_b32 v{28 + d}, v{28 + d}, v21, vcc
v_mov_b32 v21, 0x3f800000
v_cmp_eq_u32 vcc, {2 * d + 1}, v4
v_cndmask_b32 v{28 + d}, v{28 + d}, v21, vcc
""")
    lw2, lw3, lwd = a.label("L_w2"), a.label("L_w3"), a.label("L_wd")
    a(f"""
s_mov_b32 {sTile}, -1
s_cmp_eq_u32 {sWAVE}, 2
s_cbranch_scc1 {lw2}
s_cmp_eq_u32 {sWAVE}, 3
s_cbranch_scc1 {lw3}
s_lshl_b32 s46, {sWAVE}, 5
s_add_u32 s46, s46, {sH}
s_cmp_lt_u32 s46, 40
s_cselect_b32 {sTile}, s46, -1
s_lshl_b32 s46, s46, 8
v_lshlrev_b32 {vSpec}, 7, v18
v_lshl_add_u32 {vSpec}, v20, 4, {vSpec}
v_lshl_add_u32 {vSpec}, v19, 3, {vSpec}
v_add_u32 {vSpec}, s46, {vSpec}
s_branch {lwd}
{lw2}:
s_bfe_u32 s46, {sH}, 0x20002
s_lshl_b32 s46, s46, 10
s_and_b32 {sT0}, {sH}, 3
s_lshl_b32 {sT0}, {sT0}, 8
s_add_u32 s46, s46, {sT0}
s_lshr_b32 {sT0}, {sH}, 4
s_lshl_b32 {sT0}, {sT0}, 7
s_add_u32 s46, s46, {sT0}
s_add_u32 s46, s46, {WS_PMM}
v_lshlrev_b32 {vSpec}, 4, v20
v_lshl_add_u32 {vSpec}, v19, 3, {vSpec}
v_add_u32 {vSpec}, s46, {vSpec}
s_branch {lwd}
{lw3}:
s_lshl_b32 s46, {sH}, 11
s_add_u32 s46, s46, {WS_KM}
v_lshl_add_u32 {vSpec}, v5, 3, v20
v_lshlrev_b32 {vSpec}, 4, {vSpec}
v_add_u32 {vSpec}, s46, {vSpec}
{lwd}:
""")
    wait_dbg_ge(10, 64, "v18", "v3")
    lm = a.label("L_mode")
    a(f"""
s_mov_b32 {sCnt}, {SPIN}
{lm}:
buffer_load_dword v18, v3, {SDBG}, 0 offen sc1
buffer_load_dword v19, v3, {SDBG}, 0 offen offset:32 sc1
s_waitcnt vmcnt(0)
""")
    spin_check(sCnt)
    a(f"""
v_cmp_le_u32 vcc, 32, v18
s_cbranch_vccnz L_chain_fast
v_cmp_le_u32 vcc, 256, v19
s_cbranch_vccz {lm}
buffer_load_dword v18, v3, {SDBG}, 0 offen sc1
s_waitcnt vmcnt(0)
v_cmp_le_u32 vcc, 32, v18
s_cbranch_vccnz L_chain_fast
s_branch L_chain_slow
""")
    chain_loop("L_chain_fast", "")
    chain_loop("L_chain_slow", "sc1")


def kv_dma(sSeg, buf_sgpr):
    o = [f"s_lshl_b32 {sT0}, {sSeg}, 5", f"s_add_u32 {sT0}, {sT0}, {sH}", f"s_lshl_b32 {sT0}, {sT0}, 14",
         f"s_lshl_b32 {sT1}, {sWAVE}, 12", f"s_add_u32 {sT0}, {sT0}, {sT1}",
         f"s_lshl_b32 {sT2}, {buf_sgpr}, 14", f"s_add_u32 {sT1}, {sT1}, {sT2}", f"s_add_u32 m0, {sT1}, {LDS_KV}"]
    for q in range(4):
        o.append(f"buffer_load_dwordx4 {vL16}, {SWS}, {sT0} offen offset:{q * 1024} sc1 lds")
    return o


def flag_spin(sOff, vtmp):
    lp = a.label("L_fs")
    a(f"s_mov_b32 {sCnt}, {SPIN}")
    a(f"{lp}:")
    a(f"buffer_load_dword {vtmp}, v3, {SWS}, {sOff} offen sc1")
    a("s_waitcnt vmcnt(0)")
    spin_check(sCnt)
    a(f"v_cmp_eq_u32 vcc, 0, {vtmp}")
    a(f"s_cbranch_vccnz {lp}")


def chain_loop(entry, st):
    X0, X1, SM = 64, 68, 120
    PX, PM = 124, 4
    QKF = ACC
    OD = ACC
    oA = 88
    LR, ONES, LC = 20, 24, 28
    IDENT = 28
    VX = M0
    sSeg = "s62"
    L = lambda p: a.label(p)
    lstep, lnored0, lend = L("L_cstep"), L("L_nr0"), L("L_cend")
    a(f"""
{entry}:
s_mov_b32 {sS}, 0
s_mov_b32 {sMa}, 0
s_mov_b32 {sMb}, 16384
s_mov_b32 {sMc}, 32768
s_cmp_eq_u32 {sTile}, -1
s_cbranch_scc1 {lnored0}
""")
    a(f"""
v_mul_u32_u24 v18, 1280, v4
v_lshl_add_u32 v18, v5, 3, v18
s_lshl_b32 s46, {sTile}, 5
s_mov_b32 exec_lo, 0x00ff00ff
s_mov_b32 exec_hi, 0x00ff00ff
buffer_load_dwordx2 v[20:21], v18, {SM0}, s46 offen
s_waitcnt vmcnt(0)
v_min_u32 v20, {sMask}, v20
v_min_u32 v21, {sMask}, v21
s_mov_b32 {sT0}, {WS_MEM}
s_mov_b32 {sT1}, {WS_MEMX}
buffer_store_dwordx2 v[20:21], {vSpec}, {SWS}, {sT0} offen {st}
buffer_store_dwordx2 v[20:21], {vSpec}, {SWS}, {sT1} offen sc1
""")
    if DEBUG:
        a(f"s_mov_b32 {sT0}, {WS_DBG}\nbuffer_store_dwordx2 v[20:21], {vSpec}, {SWS}, {sT0} offen")
    a(f"""
s_mov_b64 exec, -1
{lnored0}:
s_lshl_b32 s46, {sH}, 2
s_add_u32 s46, s46, {F_QKV}
""")
    flag_spin("s46", vFlag)
    for sg in range(2):
        a(f"s_mov_b32 {sSeg}, {sg}")
        for i in kv_dma(sSeg, sSeg):
            a(i)
    a("s_waitcnt vmcnt(0) lgkmcnt(0)")
    a("s_barrier")
    stamp(2)
    a(f"{lstep}:")
    stamp(4, sidx=sS)
    a(f"s_and_b32 {sPh}, {sS}, 1")
    for r in range(16):
        a(f"v_mov_b32 v{ACC + r}, 0")
    for k in range(8):
        a(f"ds_read_b128 {vr(KX + 4 * k)}, {vKV} offset:{k * 1024}")
    for r in range(4):
        a(f"v_mov_b32 v{SM + r}, {vBias}")
    fills = {c: [f"ds_read_b128 {vr(VX + 4 * (c - 1))}, {vKV} offset:{8192 + (c - 1) * 1024}"] for c in range(1, 9)}
    emit_retry = mem_phase(WS_MEM, 4, lambda c, t: (c * 4 + t) * 8, "c", fills)
    for j in range(2):
        q, k = ACC + 4 * j, ACC + 8 + 4 * j
        for r in range(4):
            a(f"v_permlane32_swap_b32 v{q + r}, v{k + r}")
        for r in range(4):
            a(f"v_add_f32 v{q + r}, v{q + r}, v{k + r}")
        a(f"v_cvt_pk_bf16_f32 v{k}, v{q}, v{q + 1}")
        a(f"v_cvt_pk_bf16_f32 v{k + 1}, v{q + 2}, v{q + 3}")
        a(f"ds_write_b64 {vExW}, {vr(k, 2)} offset:{j * 512}")
    a("s_waitcnt lgkmcnt(0)")
    a("s_barrier")
    for u in range(4):
        for hh in range(2):
            a(f"ds_read_b64_tr_b16 {vr(QKF + 4 * u + 2 * hh, 2)}, {vExR} offset:{u * 1024 + hh * 512}")
    a(f"s_cmp_eq_u32 {sS}, {NSTEP}")
    a(f"s_cbranch_scc1 {lend}")
    for u in range(4):
        a(f"s_waitcnt lgkmcnt({6 - 2 * u})")
        B = vr(QKF + 4 * u)
        a(f"v_mfma_f32_16x16x32_bf16 {vr(X0)}, {vr(KX + 4 * u)}, {B}, {'0' if u == 0 else vr(X0)}")
        a(f"v_mfma_f32_16x16x32_bf16 {vr(X1)}, {vr(KX + 16 + 4 * u)}, {B}, {'0' if u == 0 else vr(X1)}")
        a(f"v_mfma_f32_16x16x32_bf16 {vr(SM)}, {B}, {B}, {vr(SM)}")
    lk, lnd, lfs, lfo, lnc = L("L_nokm"), L("L_nodma"), L("L_fslow"), L("L_fok"), L("L_noclr")
    a(f"""
s_cmp_lg_u32 {sWAVE}, 3
s_cbranch_scc1 {lk}
s_lshl_b32 {sT0}, {sS}, 16
s_mov_b32 exec_lo, 0xff00ff00
s_mov_b32 exec_hi, 0xff00ff00
""")
    for u in range(4):
        a(f"buffer_store_dwordx4 {vr(QKF + 4 * u)}, {vSpec}, {SWS}, {sT0} offen offset:{u * 512} sc1")
    a(f"""
s_mov_b64 exec, -1
{lk}:
s_add_u32 {sSeg}, {sS}, 2
s_cmp_ge_u32 {sSeg}, {NSTEP}
s_cbranch_scc1 {lnd}
v_cmp_eq_u32 vcc, 0, {vFlag}
s_cbranch_vccnz {lfs}
{lfo}:
""")
    for i in kv_dma(sSeg, sPh):
        a(i)
    a(f"""
s_add_u32 s46, {sS}, 3
s_lshr_b32 s46, s46, 2
s_min_u32 s46, s46, 15
s_lshl_b32 s46, s46, 5
s_add_u32 s46, s46, {sH}
s_lshl_b32 s46, s46, 2
s_add_u32 s46, s46, {F_QKV}
buffer_load_dword {vFlag}, v3, {SWS}, s46 offen sc1
{lnd}:
s_cmp_eq_u32 {sTile}, -1
s_cbranch_scc1 {lnc}
v_mov_b32 v18, -1
v_mov_b32 v19, -1
s_add_u32 {sT0}, {sMc}, {WS_MEM}
s_add_u32 {sT1}, {sMc}, {WS_MEMX}
s_mov_b32 exec_lo, 0x00ff00ff
s_mov_b32 exec_hi, 0x00ff00ff
buffer_store_dwordx2 v[18:19], {vSpec}, {SWS}, {sT0} offen {st}
buffer_store_dwordx2 v[18:19], {vSpec}, {SWS}, {sT1} offen sc1
s_mov_b64 exec, -1
{lnc}:
v_xor_b32 {vKV}, 0x4000, {vKV}
""")
    ST3 = [72, 80, 104, 112]
    ST2 = [32, 40, 48, 56]

    def wol(i5, u, dst):
        return [f"ds_read_b128 {vr(dst + 4 * hh)}, {vWoL} offset:{LDS_WOL + (((i5 - 2) * 4 + u) * 2 + hh) * 1024}" for hh in range(2)]
    a(f"""
v_max3_f32 v18, v{X0}, v{X0 + 1}, v{X0 + 2}
v_max3_f32 v19, v{X0 + 3}, v{X1}, v{X1 + 1}
v_max3_f32 v18, v18, v{X1 + 2}, v{X1 + 3}
v_max3_f32 v19, v19, v{SM}, v{SM + 1}
v_max3_f32 v18, v18, v{SM + 2}, v{SM + 3}
v_max_f32 v18, v18, v19
""")
    for f in wol(3, 2, ST3[2]) + wol(3, 3, ST3[3]):
        a(f)
    a(f"""
v_mov_b32 v19, v18
v_permlane32_swap_b32 v18, v19
v_max_f32 v18, v18, v19
v_mov_b32 v19, v18
v_permlane16_swap_b32 v18, v19
v_max_f32 v18, v18, v19
v_mul_f32 v18, {sNC1}, v18
""")
    for b in (X0, X1):
        for r in range(4):
            a(f"v_fma_f32 v{b + r}, v{b + r}, {sC1}, v18")
        for r in range(4):
            a(f"v_exp_f32 v{b + r}, v{b + r}")
    for i, b in enumerate((X0, X0 + 2, X1, X1 + 2)):
        a(f"v_cvt_pk_bf16_f32 v{PX + i}, v{b}, v{b + 1}")
    for i in range(4):
        a(f"v_mov_b32_dpp v{PX + i}, v{PX + i} row_shr:8 row_mask:0xf bank_mask:0xc")
    side = []
    side.append([f"v_fma_f32 v{SM + r}, v{SM + r}, {sC1}, v18" for r in range(4)])
    side.append([f"v_exp_f32 v{SM + r}, v{SM + r}" for r in range(2)])
    side.append([f"v_exp_f32 v{SM + r}, v{SM + r}" for r in range(2, 4)])

    def ocvt(t):
        d = OD + 4 * (t & 3)
        o = oA + 4 * (t >> 1) + 2 * (t & 1)
        return [f"v_cvt_pk_bf16_f32 v{o}, v{d}, v{d + 1}", f"v_cvt_pk_bf16_f32 v{o + 1}, v{d + 2}, v{d + 3}"]
    for t in range(8):
        a(f"v_mfma_f32_16x16x32_bf16 {vr(OD + 4 * (t & 3))}, {vr(VX + 4 * t)}, {vr(PX)}, 0")
        if t < 3:
            for f in side[t]:
                a(f)
        if t == 3:
            a(f"v_cvt_pk_bf16_f32 v{PM}, v{SM}, v{SM + 1}")
            a(f"v_cvt_pk_bf16_f32 v{PM + 1}, v{SM + 2}, v{SM + 3}")
            for f in ocvt(0):
                a(f)
            a(f"v_mov_b32_dpp v{PM}, v{PM} row_shr:8 row_mask:0xf bank_mask:0xc")
            a(f"v_mov_b32_dpp v{PM + 1}, v{PM + 1} row_shr:8 row_mask:0xf bank_mask:0xc")
        if t >= 4:
            for f in ocvt(t - 3):
                a(f)
        if t >= 3 and t % 2 == 1:
            for f in wol(2, (t - 3) >> 1, ST2[(t - 3) >> 1]):
                a(f)
    a(f"v_mfma_f32_16x16x32_bf16 {vr(LR)}, {vr(PX)}, {vr(ONES)}, 0")
    for r in range(8):
        a(f"v_mov_b32 v{X0 + r}, 0")
    a(f"v_mfma_f32_16x16x16_bf16 {vr(LR)}, {vr(PM, 2)}, {vr(ONES, 2)}, {vr(LR)}")
    for t in (5, 6, 7):
        for f in ocvt(t):
            a(f)
    for f in wol(2, 3, ST2[3]):
        a(f)
    a(f"v_mov_b32 v16, {sPh}" if False else "")
    lnp = L("L_nopmm")
    a(f"""
s_cmp_lg_u32 {sWAVE}, 2
s_cbranch_scc1 {lnp}
v_mfma_f32_16x16x32_bf16 {vr(LC)}, {vr(ONES)}, {vr(PX)}, 0
v_mfma_f32_16x16x16_bf16 {vr(LC)}, {vr(ONES, 2)}, {vr(PM, 2)}, {vr(LC)}
v_rcp_f32 v{LC}, v{LC}
""")
    for r in range(4):
        a(f"v_mul_f32 v{SM + r}, v{SM + r}, v{LC}")
    a(f"""
v_cvt_pk_bf16_f32 v18, v{SM}, v{SM + 1}
v_cvt_pk_bf16_f32 v19, v{SM + 2}, v{SM + 3}
v_and_b32 v18, {sMask}, v18
v_and_b32 v19, {sMask}, v19
v_or_b32 v18, {sPh}, v18
v_or_b32 v19, {sPh}, v19
s_mov_b32 exec_lo, 0
s_mov_b32 exec_hi, 0x00ff00ff
buffer_store_dwordx2 v[18:19], {vSpec}, {SWS}, 0 offen {st}
s_mov_b64 exec, -1
{lnp}:
v_mov_b32 v6, {sPh}
""")
    for r in range(4):
        a(f"v_rcp_f32 v{LR + r}, v{LR + r}")
    for f in wol(3, 0, ST3[0]) + wol(3, 1, ST3[1]):
        a(f)

    def bsrc(i, u):
        if i < 2:
            return wreg(320 + (i * 4 + u) * 8, 8)
        return vr({2: ST2, 3: ST3, 4: ST2}[i][u], 8)
    pre = {2: ["s_waitcnt lgkmcnt(0)"],
           3: sum([wol(4, u, ST2[u]) for u in range(4)], []),
           4: ["s_waitcnt lgkmcnt(0)"]}
    wo_phase_ph(oA, bsrc, [X0, X1], LR, WS_PART, st, pre, "v6")
    lnr, lw3, lnext = L("L_nored"), L("L_notw3"), L("L_cnext")
    PL, YL, PP, A1, A2 = 32, 72, 104, 64, 68
    lpl, lyl = L("L_rp"), L("L_ry")
    a(f"""
s_cmp_eq_u32 {sTile}, -1
s_cbranch_scc1 {lnr}
s_lshl_b32 s46, {sTile}, 13
s_add_u32 {sT0}, s46, {WS_PART}
s_add_u32 {sT1}, s46, {WS_PART + 4096}
s_mov_b32 {sT2}, {WS_PMM}
s_add_u32 s63, s46, {WS_Y}
s_add_u32 s46, s46, {WS_Y + 4096}
s_mov_b32 {sCnt}, {SPIN}
""")

    def yl():
        for i in range(8):
            a(f"buffer_load_dwordx4 {vr(YL + 4 * i)}, {vL16}, {SWS}, {['s63', 's46'][i >> 2]} offen offset:{(i & 3) * 1024} sc1")
    yl()
    a(f"{lpl}:")
    for i in range(8):
        a(f"buffer_load_dwordx4 {vr(PL + 4 * i)}, {vL16}, {SWS}, {[sT0, sT1][i >> 2]} offen offset:{(i & 3) * 1024} sc1")
    for i in range(4):
        a(f"buffer_load_dwordx4 {vr(PP + 4 * i)}, {vL16}, {SWS}, {sT2} offen offset:{i * 1024} sc1")
    spin_check(sCnt)
    a("s_waitcnt vmcnt(0)")
    phase_check(list(range(PL, PL + 32)) + list(range(PP, PP + 16)), "v18", lpl)
    for i in range(8):
        a(f"v_mfma_f32_16x16x32_bf16 {vr(A1)}, {vr(PL + 4 * i)}, {vr(IDENT)}, {'0' if i == 0 else vr(A1)}")
    lyc = L("L_ryc")
    a(f"s_branch {lyc}")
    a(f"{lyl}:")
    yl()
    spin_check(sCnt)
    a("s_waitcnt vmcnt(0)")
    a(f"{lyc}:")
    phase_check(list(range(YL, YL + 32)), "v18", lyl)
    for i in range(8):
        acc = A1 if i < 4 else A2
        a(f"v_mfma_f32_16x16x32_bf16 {vr(acc)}, {vr(YL + 4 * i)}, {vr(PP + 4 * (i & 3))}, {'0' if i == 4 else vr(acc)}")
    for r in range(4):
        a(f"v_add_f32_dpp v{A1 + r}, v{A2 + r}, v{A1 + r} row_shl:8 row_mask:0xf bank_mask:0x3")
    a(f"""
v_cvt_pk_bf16_f32 v18, v{A1}, v{A1 + 1}
v_cvt_pk_bf16_f32 v19, v{A1 + 2}, v{A1 + 3}
v_min_u32 v18, {sMask}, v18
v_min_u32 v19, {sMask}, v19
s_add_u32 {sT0}, {sMb}, {WS_MEM}
s_add_u32 {sT1}, {sMb}, {WS_MEMX}
s_mov_b32 exec_lo, 0x00ff00ff
s_mov_b32 exec_hi, 0x00ff00ff
buffer_store_dwordx2 v[18:19], {vSpec}, {SWS}, {sT0} offen {st}
buffer_store_dwordx2 v[18:19], {vSpec}, {SWS}, {sT1} offen sc1
""")
    if DEBUG:
        a(f"""
s_add_u32 s46, {sS}, 1
s_mul_i32 s46, s46, 10240
s_add_u32 s46, s46, {WS_DBG}
buffer_store_dwordx2 v[18:19], {vSpec}, {SWS}, s46 offen
""")
    a(f"""
s_mov_b64 exec, -1
s_branch {lnext}
{lnr}:
s_cmp_lg_u32 {sWAVE}, 3
s_cbranch_scc1 {lnext}
""")
    km_flag()
    a(f"""
{lnext}:
s_mov_b32 s46, {sMa}
s_mov_b32 {sMa}, {sMb}
s_mov_b32 {sMb}, {sMc}
s_mov_b32 {sMc}, s46
s_add_u32 {sS}, {sS}, 1
s_branch {lstep}
""")
    a(f"""
{lfs}:
s_lshr_b32 s46, {sSeg}, 2
s_lshl_b32 s46, s46, 5
s_add_u32 s46, s46, {sH}
s_lshl_b32 s46, s46, 2
s_add_u32 s46, s46, {F_QKV}
""")
    flag_spin("s46", vFlag)
    a(f"s_branch {lfo}")
    emit_retry()
    a(f"""
{lend}:
s_cmp_lg_u32 {sWAVE}, 3
s_cbranch_scc1 L_end
s_waitcnt lgkmcnt(0)
s_lshl_b32 {sT0}, {sS}, 16
s_mov_b32 exec_lo, 0xff00ff00
s_mov_b32 exec_hi, 0xff00ff00
""")
    for u in range(4):
        a(f"buffer_store_dwordx4 {vr(QKF + 4 * u)}, {vSpec}, {SWS}, {sT0} offen offset:{u * 512} sc1")
    a("s_mov_b64 exec, -1")
    km_flag()
    stamp(3)
    a("s_branch L_end")


def km_flag(slot=0, wave_slot=False):
    a(f"""
s_waitcnt vmcnt(0)
s_lshl_b32 s46, {sS}, 5
s_add_u32 s46, s46, {sH}
s_lshl_b32 s46, s46, 5
s_add_u32 s46, s46, {F_M + 4 * slot}
""")
    if wave_slot:
        a(f"s_lshl_b32 {sT0}, {sWAVE}, 2\ns_add_u32 s46, s46, {sT0}")
    a(f"""
v_mov_b32 v18, 1
s_mov_b64 exec, 1
buffer_store_dword v18, v3, {SWS}, s46 offen sc1
s_mov_b64 exec, -1
""")


def wo_phase_ph(oA, bsrc, wacc, scale, region, st, pre, vph):
    def post(i):
        w = wacc[i & 1]
        o = []
        if scale is not None:
            o += [f"v_mul_f32 v{w + r}, v{w + r}, v{scale + r}" for r in range(4)]
        o += [f"v_cvt_pk_bf16_f32 v18, v{w}, v{w + 1}", f"v_cvt_pk_bf16_f32 v19, v{w + 2}, v{w + 3}",
              f"v_and_or_b32 v18, v18, {sMask}, {vph}", f"v_and_or_b32 v19, v19, {sMask}, {vph}",
              f"s_mov_b32 {sT0}, {region + i * 65536}",
              f"buffer_store_dwordx2 v[18:19], {vPSt}, {SWS}, {sT0} offen {st}"]
        return o
    for i in range(5):
        w = wacc[i & 1]
        if pre and pre.get(i):
            for f in pre[i]:
                a(f)
        for u in range(4):
            a(f"v_smfmac_f32_16x16x64_bf16 {vr(w)}, {vr(oA + 4 * u)}, {bsrc(i, u)}, {vIdx}")
            if u == 2 and i > 0:
                for f in post(i - 1):
                    a(f)
                if i + 1 < 5:
                    wn = wacc[(i + 1) & 1]
                    for r in range(4):
                        a(f"v_mov_b32 v{wn + r}, 0")
    for f in post(4):
        a(f)


def helper_role():
    L = lambda p: a.label(p)
    a(f"""
L_helper:
s_sub_u32 {sH}, {sROLE}, 32
""")
    lane_decomp()
    stamp(0)
    a(f"""
v_mov_b32 v20, 0
v_mov_b32 v21, 0
v_mov_b32 v22, 0
v_mov_b32 v23, 0
v_lshlrev_b32 v18, 4, v0
s_lshl_b32 s46, {sH}, 12
s_add_u32 s46, s46, {WS_FLAG}
buffer_store_dwordx4 v[20:23], v18, {SWS}, s46 offen sc1
""")
    signal_init()
    if "H" not in ROLES:
        a("s_branch L_end")
    units = []
    for c in range(10):
        units.append(proj_unit(SWV, c, lambda j, i, c=c: wreg((c * 2 + j) * 8 + 2 * i, 2)))
    for i5 in range(5):
        for q2 in range(2):
            units.append(wo_unit(i5, q2, lambda u, i, i5=i5: wreg(160 + (i5 * 4 + u) * 8 + 2 * i, 2)))
    load_weights(units)
    stamp(1)
    a(f"""
s_barrier
v_lshrrev_b32 v18, 1, v5
v_and_b32 v19, 1, v5
s_lshl_b32 s46, {sWAVE}, 9
v_lshl_add_u32 {vExW}, v18, 4, v4
v_lshlrev_b32 {vExW}, 4, {vExW}
v_lshl_add_u32 {vExW}, v19, 3, {vExW}
v_add_u32 {vExW}, s46, {vExW}
v_lshl_add_u32 {vExR}, v5, 2, v6
v_lshlrev_b32 {vExR}, 4, {vExR}
v_and_b32 v20, 1, v7
v_lshl_add_u32 {vExR}, v20, 3, {vExR}
s_lshl_b32 s46, {sWAVE}, 14
s_lshl_b32 {sT0}, {sH}, 8
s_add_u32 s46, s46, {sT0}
v_lshlrev_b32 {vPSt}, 13, v18
v_lshl_add_u32 {vPSt}, v4, 4, {vPSt}
v_lshl_add_u32 {vPSt}, v19, 3, {vPSt}
v_add_u32 {vPSt}, s46, {vPSt}
s_lshl_b32 s46, {sH}, 11
s_lshl_b32 {sT0}, {sWAVE}, 9
s_add_u32 s46, s46, {sT0}
s_add_u32 s46, s46, {WS_VM}
v_lshlrev_b32 {vSpec}, 3, v1
v_add_u32 {vSpec}, s46, {vSpec}
s_mov_b32 {sMask}, 0xfffffffe
s_mov_b32 {sS}, 0
s_mov_b32 {sMa}, 0
s_mov_b32 {sMb}, 16384
s_mov_b32 {sMc}, 32768
""")
    wait_dbg_ge(10, 64, "v18", "v3")
    lstep, lend = L("L_hstep"), L("L_hend")
    vA, W0, W1 = 88, 64, 68
    a(f"{lstep}:")
    stamp(4, sidx=sS)
    a(f"s_and_b32 {sPh}, {sS}, 1")
    a(f"v_mov_b32 v6, {sPh}")
    for r in range(8):
        a(f"v_mov_b32 v{ACC + r}, 0")
    emit_retry = mem_phase(WS_MEMX, 2, lambda c, t: (c * 2 + t) * 8, "h")
    q, k = ACC, ACC + 4
    for r in range(4):
        a(f"v_permlane32_swap_b32 v{q + r}, v{k + r}")
    for r in range(4):
        a(f"v_add_f32 v{q + r}, v{q + r}, v{k + r}")
    a(f"""
v_cvt_pk_bf16_f32 v{k}, v{q}, v{q + 1}
v_cvt_pk_bf16_f32 v{k + 1}, v{q + 2}, v{q + 3}
ds_write_b64 {vExW}, {vr(k, 2)}
s_lshl_b32 {sT0}, {sS}, 16
buffer_store_dwordx2 {vr(k, 2)}, {vSpec}, {SWS}, {sT0} offen sc1
s_cmp_eq_u32 {sS}, {NSTEP}
s_cbranch_scc1 {lend}
""")
    for r in range(8):
        a(f"v_mov_b32 v{W0 + r}, 0")
    a("s_waitcnt lgkmcnt(0)")
    a("s_barrier")
    for u in range(4):
        for hh in range(2):
            a(f"ds_read_b64_tr_b16 {vr(vA + 4 * u + 2 * hh, 2)}, {vExR} offset:{(32 * u + 16 * hh) * 16}")
    a("s_waitcnt lgkmcnt(0)")
    wo_phase_ph(vA, lambda i, u: wreg(160 + (i * 4 + u) * 8, 8), [W0, W1], None, WS_Y, "sc1", None, "v6")
    km_flag(4, True)
    a(f"""
s_mov_b32 s46, {sMa}
s_mov_b32 {sMa}, {sMb}
s_mov_b32 {sMb}, {sMc}
s_mov_b32 {sMc}, s46
s_add_u32 {sS}, {sS}, 1
s_branch {lstep}
""")
    emit_retry()
    a(f"{lend}:")
    km_flag(4, True)
    stamp(3)
    a("s_branch L_end")


def phaseB():
    sWK = "s48"
    a(f"""
s_cmp_ge_u32 {sWK}, 128
s_cbranch_scc1 L_outproj
""")
    attention_role()
    outproj_role()


def attention_role():
    L = lambda p: a.label(p)
    sWK, sSg, sHd, sB = "s48", "s49", "s50", "s51"
    Q, K, V, KMr, VMr = 32, 64, 96, 128, 144
    S00, S01, S11, SM0, SM1 = 160, 164, 168, 172, 176
    DB, MBs = 180, 184
    PX0, PX1, PM0, PM1 = 20, 24, 28, 30
    O = 188
    vFm, vKm, vVm = "v9", "v10", "v11"
    if "T" not in ROLES:
        a("s_branch L_end")
    lane_decomp()
    a(f"""
s_lshr_b32 {sSg}, {sWK}, 3
s_and_b32 {sHd}, {sWK}, 7
s_lshl_b32 {sHd}, {sHd}, 2
s_add_u32 {sHd}, {sHd}, {sWAVE}
s_mov_b32 {sC1}, {C1}
s_mov_b32 {sNC1}, {NEG_C1}
v_and_b32 v18, 7, v1
v_and_b32 v19, 4, v1
v_cmp_eq_u32 vcc, 0, v19
v_cndmask_b32 {vFm}, v18, v3, vcc
v_lshlrev_b32 {vFm}, 2, {vFm}
v_lshl_add_u32 {vKm}, v5, 3, v18
v_lshlrev_b32 {vKm}, 4, {vKm}
v_and_b32 v19, 1, v5
v_lshlrev_b32 {vVm}, 7, v19
v_lshl_add_u32 {vVm}, v4, 3, {vVm}
v_mov_b32 v19, {NEGBIG}
v_cmp_lt_u32 vcc, 1, v5
v_cndmask_b32 v{MBs}, v3, v19, vcc
v_mov_b32 v{MBs + 1}, v{MBs}
v_mov_b32 v{MBs + 2}, v{MBs}
v_mov_b32 v{MBs + 3}, v{MBs}
v_mov_b32 v{PX0 + 2}, 0
v_mov_b32 v{PX0 + 3}, 0
""")
    for r in range(4):
        a(f"""
v_lshl_add_u32 v18, v5, 2, {r}
v_cmp_gt_u32 vcc, v18, v4
v_cndmask_b32 v{DB + r}, v3, v19, vcc
""")
    wait_dbg_ge(10, 64, "v18", "v3")
    lt = L("L_att")
    a(f"""
{lt}:
s_lshr_b32 s46, {sSg}, 2
s_lshl_b32 s46, s46, 5
s_add_u32 s46, s46, {sHd}
s_lshl_b32 s46, s46, 2
s_add_u32 s46, s46, {F_QKV}
""")
    flag_spin("s46", "v18")
    a(f"""
s_lshl_b32 {sB}, {sSg}, 5
s_add_u32 {sB}, {sB}, {sHd}
s_lshl_b32 {sT0}, {sB}, 13
s_add_u32 {sT0}, {sT0}, {WS_QF}
s_lshl_b32 {sT1}, {sB}, 14
""")
    for f in range(8):
        if f == 4:
            a(f"s_add_u32 {sT0}, {sT0}, 4096\ns_add_u32 {sT1}, {sT1}, 4096")
        a(f"buffer_load_dwordx4 {vr(Q + 4 * f)}, {vL16}, {SWS}, {sT0} offen offset:{(f & 3) * 1024} sc1")
        a(f"buffer_load_dwordx4 {vr(K + 4 * f)}, {vL16}, {SWS}, {sT1} offen offset:{(f & 3) * 1024} sc1")
    for f in range(8):
        if f % 4 == 0:
            a(f"s_add_u32 {sT1}, {sT1}, 4096")
        a(f"buffer_load_dwordx4 {vr(V + 4 * f)}, {vL16}, {SWS}, {sT1} offen offset:{(f & 3) * 1024} sc1")
    a("s_waitcnt vmcnt(8)")
    for u in range(4):
        a(f"v_mfma_f32_16x16x32_bf16 {vr(S00)}, {vr(K + 4 * u)}, {vr(Q + 4 * u)}, {vr(DB) if u == 0 else vr(S00)}")
        a(f"v_mfma_f32_16x16x32_bf16 {vr(S01)}, {vr(K + 4 * u)}, {vr(Q + 16 + 4 * u)}, {'0' if u == 0 else vr(S01)}")
        a(f"v_mfma_f32_16x16x32_bf16 {vr(S11)}, {vr(K + 16 + 4 * u)}, {vr(Q + 16 + 4 * u)}, {vr(DB) if u == 0 else vr(S11)}")
    lf = L("L_afm")
    a(f"""
s_lshl_b32 s46, {sB}, 5
s_add_u32 s46, s46, {F_M}
s_mov_b32 {sCnt}, {SPIN}
{lf}:
buffer_load_dword v18, {vFm}, {SWS}, s46 offen sc1
s_waitcnt vmcnt(0)
""")
    spin_check(sCnt)
    a(f"""
v_cmp_eq_u32 vcc, 0, v18
s_cbranch_vccz {lf}_ok
s_sleep 2
s_branch {lf}
{lf}_ok:
s_lshl_b32 {sT0}, {sB}, 11
s_add_u32 {sT1}, {sT0}, {WS_VM}
s_add_u32 {sT0}, {sT0}, {WS_KM}
""")
    for u in range(4):
        a(f"buffer_load_dwordx4 {vr(KMr + 4 * u)}, {vKm}, {SWS}, {sT0} offen offset:{u * 512} sc1")
    for t in range(8):
        a(f"buffer_load_dwordx2 {vr(VMr + 2 * t, 2)}, {vVm}, {SWS}, {sT1} offen offset:{t * 256} sc1")
    a("s_waitcnt vmcnt(8)")
    for u in range(4):
        a(f"v_mfma_f32_16x16x32_bf16 {vr(SM0)}, {vr(KMr + 4 * u)}, {vr(Q + 4 * u)}, {vr(MBs) if u == 0 else vr(SM0)}")
        a(f"v_mfma_f32_16x16x32_bf16 {vr(SM1)}, {vr(KMr + 4 * u)}, {vr(Q + 16 + 4 * u)}, {vr(MBs) if u == 0 else vr(SM1)}")
    for qt, tiles in enumerate(((S00, SM0), (S01, S11, SM1))):
        regs = [b + r for b in tiles for r in range(4)]
        a(f"v_max3_f32 v18, v{regs[0]}, v{regs[1]}, v{regs[2]}")
        a(f"v_max_f32 v18, v18, v{regs[3]}")
        for k in range(4, len(regs), 2):
            a(f"v_max3_f32 v18, v18, v{regs[k]}, v{regs[k + 1]}")
        a(f"""
v_mov_b32 v19, v18
v_permlane32_swap_b32 v18, v19
v_max_f32 v18, v18, v19
v_mov_b32 v19, v18
v_permlane16_swap_b32 v18, v19
v_max_f32 v18, v18, v19
v_mul_f32 v18, {sNC1}, v18
""")
        for r in regs:
            a(f"v_fma_f32 v{r}, v{r}, {sC1}, v18")
        for r in regs:
            a(f"v_exp_f32 v{r}, v{r}")
        a(f"v_add_f32 v18, v{regs[0]}, v{regs[1]}")
        for r in regs[2:]:
            a(f"v_add_f32 v18, v18, v{r}")
        a(f"""
v_mov_b32 v19, v18
v_permlane32_swap_b32 v18, v19
v_add_f32 v18, v18, v19
v_mov_b32 v19, v18
v_permlane16_swap_b32 v18, v19
v_add_f32 v18, v18, v19
v_rcp_f32 v18, v18
""")
        for r in regs:
            a(f"v_mul_f32 v{r}, v{r}, v18")
        px, pm = (PX0, PM0) if qt == 0 else (PX1, PM1)
        for i, b in enumerate(tiles[:-1]):
            a(f"v_cvt_pk_bf16_f32 v{px + 2 * i}, v{b}, v{b + 1}")
            a(f"v_cvt_pk_bf16_f32 v{px + 2 * i + 1}, v{b + 2}, v{b + 3}")
        a(f"v_cvt_pk_bf16_f32 v{pm}, v{tiles[-1]}, v{tiles[-1] + 1}")
        a(f"v_cvt_pk_bf16_f32 v{pm + 1}, v{tiles[-1] + 2}, v{tiles[-1] + 3}")
    a("s_waitcnt vmcnt(0)")
    for qt in range(2):
        for t in range(8):
            a(f"v_mfma_f32_16x16x32_bf16 {vr(O + (qt * 8 + t) * 4)}, {vr(V + 4 * t)}, {vr([PX0, PX1][qt])}, 0")
    for qt in range(2):
        for t in range(8):
            o = vr(O + (qt * 8 + t) * 4)
            a(f"v_mfma_f32_16x16x16_bf16 {o}, {vr(VMr + 2 * t, 2)}, {vr([PM0, PM1][qt], 2)}, {o}")
    a(f"""
s_lshl_b32 {sT0}, {sSg}, 18
s_lshl_b32 {sT1}, {sHd}, 12
s_add_u32 {sT0}, {sT0}, {sT1}
s_add_u32 {sT0}, {sT0}, {WS_OF}
""")
    for qt in range(2):
        if qt:
            a(f"s_add_u32 {sT0}, {sT0}, 131072")
        for u in range(4):
            b = O + (qt * 8 + 2 * u) * 4
            d = Q + (qt * 4 + u) * 4
            for i in range(4):
                a(f"v_cvt_pk_bf16_f32 v{d + i}, v{b + 2 * i}, v{b + 2 * i + 1}")
            a(f"buffer_store_dwordx4 {vr(d)}, {vL16}, {SWS}, {sT0} offen offset:{u * 1024} sc1")
    a(f"""
s_waitcnt vmcnt(0)
s_lshl_b32 s46, {sB}, 2
s_add_u32 s46, s46, {F_O}
v_mov_b32 v18, 1
s_mov_b64 exec, 1
buffer_store_dword v18, v3, {SWS}, s46 offen sc1
s_mov_b64 exec, -1
""")
    stamp(40, sidx=sSg)
    a(f"""
s_add_u32 {sSg}, {sSg}, 16
s_cmp_lt_u32 {sSg}, 64
s_cbranch_scc1 {lt}
s_branch L_end
""")


def outproj_role():
    L = lambda p: a.label(p)
    sWK, sSg, sCB, sJ = "s48", "s49", "s50", "s51"
    vSrc, vTr, vFo, vOut, vLw, vLr = "v9", "v10", "v11", "v12", "v13", "v14"
    R0, NR = 40, 48
    AC = 20
    l2, ld = L("L_op2"), L("L_opd")
    a(f"""
L_outproj:
""")
    if "O" not in ROLES:
        a("s_branch L_end")
    a(f"""
s_and_b32 {sJ}, {sWK}, 31
s_bfe_u32 {sSg}, {sWK}, 0x10005
s_mov_b32 {sCB}, {sJ}
s_cmp_lt_u32 {sJ}, 20
s_cbranch_scc1 {ld}
s_mul_i32 s46, {sSg}, 12
s_sub_u32 {sCB}, {sJ}, 20
s_add_u32 {sCB}, {sCB}, s46
s_mov_b32 {sSg}, 2
s_cmp_ge_u32 {sCB}, 20
s_cbranch_scc1 L_end
{ld}:
""")
    lane_decomp()
    a(f"""
s_lshl_b32 {sLB}, {sWAVE}, 15
v_lshrrev_b32 v18, 2, v1
v_mul_u32_u24 {vSrc}, 1280, v18
v_lshl_add_u32 {vSrc}, v7, 4, {vSrc}
v_lshl_add_u32 {vTr}, v5, 2, v6
v_lshlrev_b32 {vTr}, 6, {vTr}
v_lshl_add_u32 {vTr}, v7, 3, {vTr}
v_add_u32 {vTr}, {sLB}, {vTr}
s_mul_i32 {sT1}, {sWAVE}, {8 * 163840}
s_lshl_b32 s46, {sCB}, 6
s_add_u32 {sT1}, {sT1}, s46
""")

    def issue(k):
        for q in range(4):
            a(f"s_add_u32 m0, {sLB}, {(k % 8) * 4096 + q * 1024}")
            a(f"s_add_u32 {sT0}, {sT1}, {(64 * k + 16 * q) * 1280}")
            a(f"buffer_load_dwordx4 {vSrc}, {SWO}, {sT0} offen lds")

    def afr(hl, u, j2):
        return ((hl * 4 + u) * 2 + j2) * 4
    for k in range(8):
        issue(k)
    for k in range(16):
        left = min(16, k + 8) - (k + 1)
        a(f"s_waitcnt vmcnt({4 * left})")
        hl, q2 = k >> 1, k & 1
        for ul in range(2):
            for j2 in range(2):
                for hh in range(2):
                    b = afr(hl, 2 * q2 + ul, j2) + 2 * hh
                    a(f"ds_read_b64_tr_b16 a[{b}:{b + 1}], {vTr} offset:{(k % 8) * 4096 + (32 * ul + 16 * hh) * 64 + j2 * 32}")
        if k + 8 < 16:
            a("s_waitcnt lgkmcnt(0)")
            issue(k + 8)
    a(f"""
s_waitcnt lgkmcnt(0)
s_barrier
v_and_b32 v18, 7, v1
s_lshl_b32 s46, {sWAVE}, 5
v_lshlrev_b32 {vFo}, 2, v18
v_add_u32 {vFo}, s46, {vFo}
s_lshr_b32 s46, {sWAVE}, 1
s_mul_i32 s46, s46, {16 * 1280}
s_and_b32 {sT0}, {sWAVE}, 1
s_lshl_b32 {sT0}, {sT0}, 5
s_add_u32 s46, s46, {sT0}
s_lshl_b32 {sT0}, {sCB}, 6
s_add_u32 s46, s46, {sT0}
v_mul_u32_u24 {vOut}, 1280, v4
v_lshl_add_u32 {vOut}, v5, 3, {vOut}
v_add_u32 {vOut}, s46, {vOut}
s_lshl_b32 s46, {sWAVE}, 12
v_add_u32 {vLw}, s46, {vL16}
s_lshl_b32 s46, {sWAVE}, 10
v_add_u32 {vLr}, s46, {vL16}
""")
    wait_dbg_ge(10, 64, "v18", "v3")
    lt, lf = L("L_ops"), L("L_opf")
    a(f"""
{lt}:
s_lshl_b32 s46, {sSg}, 7
s_add_u32 s46, s46, {F_O}
s_mov_b32 {sCnt}, {SPIN}
{lf}:
buffer_load_dword v18, {vFo}, {SWS}, s46 offen sc1
s_waitcnt vmcnt(0)
""")
    spin_check(sCnt)
    a(f"""
v_cmp_eq_u32 vcc, 0, v18
s_cbranch_vccz {lf}_ok
s_sleep 2
s_branch {lf}
{lf}_ok:
s_lshl_b32 {sT1}, {sSg}, 18
s_lshl_b32 s46, {sWAVE}, 15
s_add_u32 {sT1}, {sT1}, s46
s_add_u32 {sT1}, {sT1}, {WS_OF}
""")

    def ofl(i):
        qt, hl, u = i >> 5, (i >> 2) & 7, i & 3
        o = []
        if u == 0:
            o.append(f"s_add_u32 {sT0}, {sT1}, {qt * 131072 + hl * 4096}")
        o.append(f"buffer_load_dwordx4 {vr(R0 + 4 * (i % NR))}, {vL16}, {SWS}, {sT0} offen offset:{u * 1024} sc1")
        return o
    for i in range(NR):
        for f in ofl(i):
            a(f)
    for i in range(64):
        qt, hl, u = i >> 5, (i >> 2) & 7, i & 3
        issued = min(64, NR + max(0, i - 1))
        a(f"s_waitcnt vmcnt({issued - i - 1})")
        for j2 in range(2):
            ac = vr(AC + (qt * 2 + j2) * 4)
            b = afr(hl, u, j2)
            a(f"v_mfma_f32_16x16x32_bf16 {ac}, a[{b}:{b + 3}], {vr(R0 + 4 * (i % NR))}, {'0' if (i & 31) == 0 else ac}")
        if i >= 1 and i - 1 + NR < 64:
            for f in ofl(i - 1 + NR):
                a(f)
    for t in range(4):
        a(f"ds_write_b128 {vLw}, {vr(AC + 4 * t)} offset:{t * 1024}")
    a("s_waitcnt lgkmcnt(0)")
    a("s_barrier")
    for w in range(4):
        a(f"ds_read_b128 {vr(R0 + 4 * w)}, {vLr} offset:{w * 4096}")
    a(f"""
v_xor_b32 {vLw}, 0x4000, {vLw}
v_xor_b32 {vLr}, 0x4000, {vLr}
s_mul_i32 {sT0}, {sSg}, {32 * 1280}
s_waitcnt lgkmcnt(0)
""")
    for r in range(4):
        a(f"v_add_f32 v{R0 + r}, v{R0 + r}, v{R0 + 4 + r}")
        a(f"v_add_f32 v{R0 + 8 + r}, v{R0 + 8 + r}, v{R0 + 12 + r}")
    for r in range(4):
        a(f"v_add_f32 v{R0 + r}, v{R0 + r}, v{R0 + 8 + r}")
    a(f"""
v_cvt_pk_bf16_f32 v18, v{R0}, v{R0 + 1}
v_cvt_pk_bf16_f32 v19, v{R0 + 2}, v{R0 + 3}
buffer_store_dwordx2 v[18:19], {vOut}, {SOUT}, {sT0} offen
""")
    stamp(40, sidx=sSg)
    a(f"""
s_add_u32 {sSg}, {sSg}, 3
s_cmp_lt_u32 {sSg}, 64
s_cbranch_scc1 {lt}
s_branch L_end
""")
```

```python
import os
import sys

sys.path.insert(0, os.path.dirname(os.path.abspath(__file__)))
from asmlib import Asm

KNAME = "standalone__memory_aug_recurrent_mem_tr__prompt_kernel"
DEBUG = int(os.environ.get("KDEBUG", "0"))
ROLES = os.environ.get("KROLES", "ACHTO")
FAKEXCC = int(os.environ.get("KFAKEXCC", "0"))
NSTEP = 63
SPIN = 1 << 18

MB = 1 << 20
WS_KV = 0
WS_QF = 32 * MB
WS_OF = 48 * MB
WS_KM = 64 * MB
WS_VM = 68 * MB
WS_PART = 72 * MB
WS_Y = 73 * MB
RING_P = 327680
WS_PMM = 74 * MB
WS_MEM = 74 * MB + 65536
WS_MEMX = 74 * MB + 131072
WS_FLAG = 75 * MB
F_QKV = WS_FLAG
F_O = WS_FLAG + 4096
F_M = WS_FLAG + 16384
FLAG_BYTES = 16384 + 65536
WS_DBG = 76 * MB
WS_SIZE = 256 * MB

SX, SM0, SWQ, SWK, SWV, SWO, SOUT, SDBG, SWS = [f"s[{8 + 4 * i}:{11 + 4 * i}]" for i in range(9)]
sWAVE, sROLE = "s44", "s45"

a = Asm()


def interleave(main, fill, start=0, every=1):
    fi = 0
    for i, m in enumerate(main):
        a(m)
        if i >= start and (i - start) % every == 0 and fi < len(fill):
            for f in fill[fi]:
                a(f)
            fi += 1
    while fi < len(fill):
        for f in fill[fi]:
            a(f)
        fi += 1


STAMP = int(os.environ.get("KSTAMP", "0"))
WS_STAMP = 78 * MB


def stamp(i, clock="real", sidx=None):
    if not STAMP:
        return
    a(f"""
s_{'memrealtime' if clock == 'real' else 'memtime'} s[98:99]
s_lshl_b32 s100, {sROLE}, 2
s_add_u32 s100, s100, {sWAVE}
s_lshl_b32 s100, s100, 10
s_add_u32 s100, s100, {WS_STAMP + 4 * i}
""")
    if sidx is not None:
        a(f"s_lshl_b32 s101, {sidx}, 2\ns_add_u32 s100, s100, s101")
    a(f"""
s_waitcnt lgkmcnt(0)
s_mov_b64 s[96:97], exec
s_mov_b64 exec, 1
v_mov_b32 v2, s98
buffer_store_dword v2, v3, {SWS}, s100 offen
s_mov_b64 exec, s[96:97]
""")


def spin_check(cnt):
    a(f"s_sub_u32 {cnt}, {cnt}, 1")
    a("s_cbranch_scc1 L_abort")


def wait_dbg_ge(idx, val, vtmp, vzero, cnt="s47"):
    lp = a.label("L_wdbg")
    a(f"s_mov_b32 {cnt}, {SPIN}")
    a(f"{lp}:")
    a(f"buffer_load_dword {vtmp}, {vzero}, {SDBG}, 0 offen offset:{4 * idx} sc1")
    a("s_waitcnt vmcnt(0)")
    spin_check(cnt)
    a(f"v_cmp_gt_u32 vcc, {val}, {vtmp}")
    a(f"s_cbranch_vccnz {lp}")


def prologue():
    a(f"""
; @launch grid=(256,1,1) block=(256,1,1) lds=163840
.amdgcn_target "amdgcn-amd-amdhsa--gfx950"
.text
.globl {KNAME}
.p2align 8
.type {KNAME},@function
{KNAME}:
s_cmp_ge_u32 s2, 256
s_cbranch_scc1 L_end
s_load_dwordx16 s[64:79], s[0:1], 0
s_load_dwordx4 s[80:83], s[0:1], 64
v_lshrrev_b32 v2, 6, v0
v_and_b32 v1, 63, v0
v_mov_b32 v3, 0
v_readfirstlane_b32 {sWAVE}, v2
s_waitcnt lgkmcnt(0)
""")
    sizes = [2048 * 1280, 8 * 1280, 640 * 8192, 640 * 8192, 640 * 8192, 4096 * 1280, None, 2048 * 1280, 256, WS_SIZE]
    k = 0
    for i, sz in enumerate(sizes):
        if sz is None:
            continue
        b = 8 + 4 * k
        a(f"s_mov_b32 s{b}, s{64 + 2 * i}")
        a(f"s_and_b32 s{b + 1}, s{65 + 2 * i}, 0xffff")
        a(f"s_mov_b32 s{b + 2}, {sz}")
        a(f"s_mov_b32 s{b + 3}, 0x20000")
        k += 1
    a(f"""
s_cmp_lg_u32 {sWAVE}, 0
s_cbranch_scc1 L_role_wait
s_mov_b64 exec, 1
s_getreg_b32 s46, hwreg(HW_REG_XCC_ID, 0, 4)
s_and_b32 s46, s46, 7
""")
    if FAKEXCC == 1:
        a("s_lshr_b32 s46, s2, 4\ns_min_u32 s46, s46, 7\ns_xor_b32 s46, s46, 7\ns_min_u32 s46, s46, 6\ns_xor_b32 s46, s46, 3")
    a(f"""
s_lshl_b32 s47, s46, 2
v_mov_b32 v4, 1
v_mov_b32 v5, 1
buffer_atomic_add v4, v3, {SDBG}, s47 offen sc0
s_waitcnt vmcnt(0)
buffer_atomic_add v5, v3, {SDBG}, 0 offen offset:32
s_lshl_b32 s47, s46, 5
v_cmp_gt_u32 vcc, 32, v4
v_add_u32 v4, s47, v4
s_cbranch_vccnz L_role_pub
v_mov_b32 v6, 1
buffer_atomic_add v6, v3, {SDBG}, 0 offen offset:36 sc0
""")
    wait_dbg_ge(8, 256, "v4", "v3")
    a(f"""
buffer_load_dwordx4 v[8:11], v3, {SDBG}, 0 offen sc1
buffer_load_dwordx4 v[12:15], v3, {SDBG}, 0 offen offset:16 sc1
s_waitcnt vmcnt(0)
v_mov_b32 v4, 0
""")
    for x in range(8):
        a(f"""
v_min_u32 v16, 32, v{8 + x}
v_sub_u32 v17, 32, v16
v_add_u32 v18, v16, v6
v_add_u32 v18, {32 * x}, v18
v_cmp_lt_u32 vcc, v6, v17
v_cndmask_b32 v4, v4, v18, vcc
v_sub_u32 v6, v6, v17
""")
    a(f"""
L_role_pub:
ds_write_b32 v3, v4
s_waitcnt lgkmcnt(0)
s_mov_b64 exec, -1
L_role_wait:
s_barrier
ds_read_b32 v4, v3
s_waitcnt lgkmcnt(0)
v_readfirstlane_b32 {sROLE}, v4
s_barrier
s_and_b32 {sROLE}, {sROLE}, 255
s_cmp_lt_u32 {sROLE}, 32
s_cbranch_scc1 L_chain
s_cmp_lt_u32 {sROLE}, 64
s_cbranch_scc1 L_helper
s_branch L_worker
""")


def epilogue():
    a(f"""
L_abort:
s_mov_b64 exec, 1
v_mov_b32 v3, 0
v_mov_b32 v4, 1
buffer_atomic_add v4, v3, {SDBG}, 0 offen offset:60
s_waitcnt vmcnt(0)
L_end:
s_endpgm
.section .rodata,"a"
.p2align 6
.amdhsa_kernel {KNAME}
.amdhsa_next_free_vgpr 512
.amdhsa_next_free_sgpr 102
.amdhsa_accum_offset 256
.amdhsa_group_segment_fixed_size 0
.amdhsa_kernarg_size 80
.amdhsa_user_sgpr_count 2
.amdhsa_user_sgpr_kernarg_segment_ptr 1
.amdhsa_system_sgpr_workgroup_id_x 1
.end_amdhsa_kernel
""")


def gemm_role():
    sWK, sTAU, sT, sH = "s48", "s49", "s50", "s51"
    sBLK = "s62"
    sXo, sWo, sLX, sLW, sTmp = "s52", "s53", "s54", "s55", "s56"
    vX, vW, vXr0, vXr1, vT00, vT01, vT10, vT11, vL16 = [f"v{i}" for i in range(8, 17)]
    W = [SWQ, SWK, SWV]
    NST = 20

    a(f"""
L_worker:
s_sub_u32 {sWK}, {sROLE}, 64
s_lshr_b32 {sBLK}, {sWK}, 5
s_mov_b32 s57, 0
v_and_b32 v4, 15, v1
v_lshrrev_b32 v5, 4, v1
v_lshlrev_b32 {vL16}, 4, v1
v_mul_u32_u24 {vX}, 1280, v4
v_lshl_add_u32 {vX}, v5, 4, {vX}
s_mul_i32 s46, {sWAVE}, {2 * 16 * 1280}
v_add_u32 {vX}, s46, {vX}
v_lshrrev_b32 v6, 2, v1
v_and_b32 v7, 3, v1
v_lshrrev_b32 v17, 5, v1
v_lshlrev_b32 v17, 1, v17
v_xor_b32 v7, v7, v17
v_lshlrev_b32 {vW}, 13, v6
v_lshl_add_u32 {vW}, v7, 4, {vW}
s_lshl_b32 s46, {sWAVE}, 6
v_add_u32 {vW}, s46, {vW}
v_mov_b32 {vXr0}, {vL16}
v_add_u32 {vXr1}, 0x10000, {vL16}
v_lshrrev_b32 v6, 2, v4
v_lshl_add_u32 v6, v5, 3, v6
v_lshlrev_b32 v6, 6, v6
v_and_b32 v7, 3, v1
v_lshl_add_u32 v6, v7, 3, v6
s_mul_i32 s46, {sWAVE}, 6144
s_add_u32 s46, s46, 8192
v_add_u32 v6, s46, v6
v_and_b32 v7, 1, v5
v_lshl_add_u32 {vT00}, v7, 5, v6
v_xor_b32 v7, 1, v7
v_lshl_add_u32 {vT10}, v7, 5, v6
v_add_u32 {vT01}, 0x10000, {vT00}
v_add_u32 {vT11}, 0x10000, {vT10}
s_lshl_b32 {sLX}, {sWAVE}, 11
s_mul_i32 {sLW}, {sWAVE}, 6144
s_add_u32 {sLW}, {sLW}, 8192
""")
    stamp(0)
    if "A" not in ROLES:
        a("s_branch L_phaseB")
    a(f"""
L_gemm_task:
s_and_b32 s46, {sBLK}, 12
s_bfe_u32 {sT}, {sWK}, 0x20003
s_add_u32 {sT}, {sT}, s46
s_and_b32 s46, {sBLK}, 3
s_lshl_b32 s46, s46, 3
s_and_b32 {sH}, {sWK}, 7
s_add_u32 {sH}, {sH}, s46
s_lshl_b32 {sTAU}, {sT}, 5
s_add_u32 {sTAU}, {sTAU}, {sH}
s_mul_i32 {sXo}, {sT}, {128 * 1280}
s_lshl_b32 {sWo}, {sH}, 8
""")

    def dma(st):
        buf = st % 4
        g = []
        for i in range(2):
            g.append([f"s_add_u32 m0, {sLX}, {buf * 32768 + i * 1024}",
                      f"s_add_u32 {sTmp}, {sXo}, {st * 64 + i * 16 * 1280}",
                      f"buffer_load_dwordx4 {vX}, {SX}, {sTmp} offen lds"])
        for m in range(3):
            for hf in range(2):
                g.append([f"s_add_u32 m0, {sLW}, {buf * 32768 + m * 2048 + hf * 1024}",
                          f"s_add_u32 {sTmp}, {sWo}, {(32 * st + 16 * hf) * 8192}",
                          f"buffer_load_dwordx4 {vW}, {W[m]}, {sTmp} offen lds"])
        return g

    def fragX(sg, tt):
        b = sg * 56 + tt * 4
        return f"a[{b}:{b + 3}]"

    def fragW(sg, mj, q=None):
        b = sg * 56 + 32 + mj * 4
        if q is None:
            return f"a[{b}:{b + 3}]"
        return f"a[{b + 2 * q}:{b + 2 * q + 1}]"

    def acc(mj, tt):
        b = 64 + (mj * 8 + tt) * 4
        return f"v[{b}:{b + 3}]"

    def reads(st):
        buf, sg = st % 4, st % 2
        hi, off = buf >> 1, (buf & 1) * 32768
        g = []
        order = []
        for mj in range(6):
            m, j = mj >> 1, mj & 1
            base = [[vT00, vT01], [vT10, vT11]][j][hi]
            order.append([f"ds_read_b64_tr_b16 {fragW(sg, mj, q)}, {base} offset:{off + m * 2048 + q * 256}" for q in range(2)])
        xs = [[f"ds_read_b128 {fragX(sg, tt)}, {[vXr0, vXr1][hi]} offset:{off + tt * 1024}"] for tt in range(8)]
        for i in range(8):
            g.append(xs[i])
            if i < 6:
                g.append(order[i])
        return g

    for st in range(4):
        for grp in dma(st):
            for ins in grp:
                a(ins)
    a("s_waitcnt vmcnt(24)")
    a("s_barrier")
    for grp in reads(0):
        for ins in grp:
            a(ins)
    for st in range(NST):
        sg = st % 2
        nout = 8 * sum(1 for x in (st + 2, st + 3) if x < NST)
        if st + 1 < NST:
            a(f"s_waitcnt vmcnt({nout}) lgkmcnt(0)")
            a("s_barrier")
        else:
            a("s_waitcnt lgkmcnt(0)")
        mf = []
        for mj in range(6):
            for tt in range(8):
                c = "0" if st == 0 else acc(mj, tt)
                if mj < 4:
                    mf.append(f"v_mfma_f32_16x16x32_bf16 {acc(mj, tt)}, {fragW(sg, mj)}, {fragX(sg, tt)}, {c}")
                else:
                    mf.append(f"v_mfma_f32_16x16x32_bf16 {acc(mj, tt)}, {fragX(sg, tt)}, {fragW(sg, mj)}, {c}")
        fill = []
        if st + 1 < NST:
            fill += reads(st + 1)
        if st + 4 < NST:
            fill += dma(st + 4)
        interleave(mf, fill, start=0, every=2)
    stamp(1, sidx=sBLK)
    sKV, sQ = "s58", "s59"
    a(f"""
s_lshl_b32 s46, {sT}, 7
s_add_u32 s46, s46, {sH}
s_lshl_b32 {sKV}, s46, 14
s_lshl_b32 {sQ}, s46, 13
s_add_u32 {sQ}, {sQ}, {WS_QF}
s_lshl_b32 s46, {sWAVE}, 10
s_add_u32 {sQ}, {sQ}, s46
s_add_u32 s60, {sKV}, s46
s_lshl_b32 s46, {sWAVE}, 11
s_add_u32 s61, {sKV}, s46
s_add_u32 s61, s61, 8192
""")
    tmp = 20
    n = 0

    def pack(dst, s0, s1):
        a(f"v_cvt_pk_bf16_f32 v{dst}, v{s0}, v{s0 + 1}")
        a(f"v_cvt_pk_bf16_f32 v{dst + 1}, v{s0 + 2}, v{s0 + 3}")
        a(f"v_cvt_pk_bf16_f32 v{dst + 2}, v{s1}, v{s1 + 1}")
        a(f"v_cvt_pk_bf16_f32 v{dst + 3}, v{s1 + 2}, v{s1 + 3}")

    def accb(mj, tt):
        return 64 + (mj * 8 + tt) * 4

    for m, sb, segstride in ((1, "s60", 32 * 16384), (0, sQ, 32 * 8192)):
        for tt in range(8):
            d = tmp + 4 * (n % 8)
            n += 1
            pack(d, accb(2 * m, tt), accb(2 * m + 1, tt))
            a(f"s_add_u32 {sTmp}, {sb}, {(tt >> 1) * segstride + (tt & 1) * 4096}")
            a(f"buffer_store_dwordx4 v[{d}:{d + 3}], {vL16}, {SWS}, {sTmp} offen sc1")
        if m == 1:
            for ss in range(4):
                for j in range(2):
                    d = tmp + 4 * (n % 8)
                    n += 1
                    pack(d, accb(4 + j, 2 * ss), accb(4 + j, 2 * ss + 1))
                    a(f"s_add_u32 {sTmp}, s61, {ss * 32 * 16384 + j * 1024}")
                    a(f"buffer_store_dwordx4 v[{d}:{d + 3}], {vL16}, {SWS}, {sTmp} offen sc1")
    a(f"""
s_waitcnt vmcnt(0)
""")
    stamp(20, sidx=sBLK)
    a(f"""
s_barrier
s_cmp_lg_u32 {sWAVE}, 0
s_cbranch_scc1 L_gemm_next
s_cmp_lg_u32 s57, 0
s_cbranch_scc1 L_gemm_flag
""")
    wait_dbg_ge(10, 64, "v4", "v3")
    a(f"""
s_mov_b32 s57, 1
L_gemm_flag:
s_lshl_b32 s46, {sTAU}, 2
s_add_u32 s46, s46, {F_QKV}
v_mov_b32 v4, 1
s_mov_b64 exec, 1
buffer_store_dword v4, v3, {SWS}, s46 offen sc1
s_mov_b64 exec, -1
L_gemm_next:
s_add_u32 {sBLK}, {sBLK}, 6
s_cmp_lt_u32 {sBLK}, 16
s_cbranch_scc1 L_gemm_task
L_phaseB:
""")


def stub(label):
    a(f"{label}:")
    a("s_branch L_end")


def main():
    prologue()
    gemm_role()
    try:
        import roles2
        roles2.emit(globals())
    except ImportError:
        a("s_branch L_end")
        for lab in ("L_chain", "L_helper"):
            a(f"""
{lab}:
s_cmp_lg_u32 {sWAVE}, 0
s_cbranch_scc1 L_end
s_mov_b64 exec, 1
v_mov_b32 v4, 1
buffer_atomic_add v4, v3, {SDBG}, 0 offen offset:40
s_waitcnt vmcnt(0)
s_branch L_end
""")
    epilogue()
    out = sys.argv[1] if len(sys.argv) > 1 else "standalone__memory_aug_recurrent_mem_tr__prompt.s"
    txt = a.finish()
    open(out, "w").write(txt)
    print(f"wrote {out}: {len(txt)} bytes, {sum(1 for k, _ in a.lines if k == 'i')} instrs, {a.nnop} nops inserted")


if __name__ == "__main__":
    main()
```
